```python
import torch

def _softmax(x, axis=-1):
    return torch.softmax(x, dim=axis)
def _gelu(x):
    return torch.nn.functional.gelu(x, approximate="tanh")
def _silu(x):
    return torch.nn.functional.silu(x)
def _sigmoid(x):
    return torch.sigmoid(x)
def _layernorm(x, axis=-1, eps=1e-5):
    m = x.mean(dim=axis, keepdim=True)
    v = x.var(dim=axis, keepdim=True, unbiased=False)
    return (x - m) / torch.sqrt(v + eps)
def _scatter_add(tgt, idx, src, axis=0):
    return tgt.clone().index_add_(axis, idx, src)
def _segment_sum(src, seg, n):
    out = torch.zeros((n,) + src.shape[1:], dtype=src.dtype)
    return out.index_add_(0, seg, src)
def _pad(x, pw):
    flat = tuple(v for pair in reversed(pw) for v in pair)
    return torch.nn.functional.pad(x, flat)

kernel_name = 'recurrent_scan__ssm_conv_s5__dense_activation_mish__prompt'

def setup_inputs():

    _w = (lambda a: (lambda t: t.to(torch.bfloat16) if t.is_floating_point() else t)(torch.as_tensor(a)))
    def _A_setup():
        B, S, D = 1, 2048, 512
        P = D
        Lambda_re = -0.5 * (lambda _x: torch.exp(torch.as_tensor(_x)))((lambda *s: torch.randn(*s, dtype=torch.bfloat16) * 0.4)(P))
        Lambda_im = (lambda *s: torch.randn(*s, dtype=torch.bfloat16) * 0.8)(P) * 1.0
        B_re = (lambda *s: torch.randn(*s, dtype=torch.bfloat16) * 0.4)(P, D) * (D ** -0.5)
        B_im = (lambda *s: torch.randn(*s, dtype=torch.bfloat16) * 0.4)(P, D) * (D ** -0.5)
        C_re = (lambda *s: torch.randn(*s, dtype=torch.bfloat16) * 0.4)(D, P) * (P ** -0.5)
        C_im = (lambda *s: torch.randn(*s, dtype=torch.bfloat16) * 0.4)(D, P) * (P ** -0.5)
        log_dt = (lambda *s: torch.randn(*s, dtype=torch.bfloat16) * 0.4)(P) * 0.3 - 2.0
        Dskip = (lambda *s: torch.randn(*s, dtype=torch.bfloat16) * 0.2)(D)
        return {
            "x": _w((lambda *s: torch.randn(*s, dtype=torch.bfloat16) * 0.05)(B, S, D)),
            "Lambda_re": _w(Lambda_re),
            "Lambda_im": _w(Lambda_im),
            "B_re": _w(B_re),
            "B_im": _w(B_im),
            "C_re": _w(C_re),
            "C_im": _w(C_im),
            "log_dt": _w(log_dt),
            "Dskip": _w(Dskip),
        }
    _A_in = _A_setup()

    def _B_setup():
        B, S, D, F = 1, 2048, 512, 1376
        return {
            "x": _w((lambda *s: torch.randn(*s, dtype=torch.bfloat16) * 0.05)(B, S, D)),
            "w1": _w((lambda *s: torch.randn(*s, dtype=torch.bfloat16) * 0.8)(D, F) * (D ** -0.5)),
            "b1": _w((lambda *s: torch.randn(*s, dtype=torch.bfloat16) * 0.2)(F)),
            "w2": _w((lambda *s: torch.randn(*s, dtype=torch.bfloat16) * 0.1)(F, D) * (F ** -0.5)),
        }
    _B_in = _B_setup()

    return {
        "A_x": _A_in["x"],
        "A_Lambda_re": _A_in["Lambda_re"],
        "A_Lambda_im": _A_in["Lambda_im"],
        "A_B_re": _A_in["B_re"],
        "A_B_im": _A_in["B_im"],
        "A_C_re": _A_in["C_re"],
        "A_C_im": _A_in["C_im"],
        "A_log_dt": _A_in["log_dt"],
        "A_Dskip": _A_in["Dskip"],
        "B_x": _B_in["x"],
        "B_w1": _B_in["w1"],
        "B_b1": _B_in["b1"],
        "B_w2": _B_in["w2"],
    }

def reference(A_x, A_Lambda_re, A_Lambda_im, A_B_re, A_B_im, A_C_re, A_C_im, A_log_dt, A_Dskip, B_x, B_w1, B_b1, B_w2):
    def _A_ref(x, Lambda_re, Lambda_im, B_re, B_im, C_re, C_im, log_dt, Dskip):
        Bsz, L, H = x.shape
        Lam = Lambda_re + 1j * Lambda_im
        Bmat = B_re + 1j * B_im
        Cmat = C_re + 1j * C_im
        dt = torch.exp(log_dt)
        Lam_bar = torch.exp(dt * Lam)
        B_bar = ((Lam_bar - 1.0) / Lam)[:, None] * Bmat
        Bu = torch.einsum("bld,pd->blp", x + 0j, B_bar)
        h = torch.zeros_like(Bu[:, 0, :])
        hs = []
        for t in range(L):
            h = Lam_bar[None, :] * h + Bu[:, t, :]
            hs.append(h)
        hseq = torch.stack(hs, 1)
        y = 2.0 * torch.einsum("blp,dp->bld", hseq, Cmat).real + x * Dskip[None, None, :]
        return y

    def _B_ref(x, w1, b1, w2):
        h = torch.einsum("bsd,df->bsf", x, w1) + b1
        sp = torch.log1p(torch.exp(-torch.abs(h))) + torch.where(h > 0, h, torch.zeros_like(h))
        act = h * torch.tanh(sp)
        return torch.einsum("bsf,fd->bsd", act, w2)

    x = A_x
    xn = _layernorm(x, axis=-1)
    s = _A_ref(xn, A_Lambda_re, A_Lambda_im, A_B_re, A_B_im, A_C_re, A_C_im, A_log_dt, A_Dskip)
    g = _silu(_B_ref(xn, B_w1, B_b1, B_w2))
    return x + s * g
```

```python
import re
TRANS = ('v_exp_f32','v_log_f32','v_rcp_f32','v_rsq_f32','v_sqrt_f32','v_sin_f32','v_cos_f32')
def regs_of(op):
    op = op.strip()
    op = op.lstrip('-')
    m = re.fullmatch(r'abs\((.*)\)', op) or re.fullmatch(r'\|(.*)\|', op)
    if m: op = m.group(1)
    m = re.fullmatch(r'([vsa])(\d+)', op)
    if m: return {(m.group(1), int(m.group(2)))}
    m = re.fullmatch(r'([vsa])\[(\d+):(\d+)\]', op)
    if m: return {(m.group(1), i) for i in range(int(m.group(2)), int(m.group(3))+1)}
    if op in ('vcc','vcc_lo','vcc_hi'): return {('vcc',0)}
    if op == 'm0': return {('m0',0)}
    if op in ('exec','exec_lo','exec_hi'): return {('exec',0)}
    return set()

class Ins:
    def __init__(self, text):
        self.text = text
        t = text.split(';')[0].strip()
        self.label = t.endswith(':')
        self.directive = t.startswith('.')
        self.mn = '' if (self.label or self.directive or not t) else t.split()[0]
        rest = t[len(self.mn):].strip() if self.mn else ''
        rest = re.sub(r'\b(op_sel|op_sel_hi|neg_lo|neg_hi):\[[^\]]*\]', '', rest).strip()
        ops = [o.strip().split()[0] for o in rest.split(',') if o.strip()] if rest else []
        self.ops = ops
        mn = self.mn
        self.mfma = mn.startswith('v_mfma')
        self.valu = mn.startswith('v_') and not self.mfma
        self.trans = mn.replace('_e32','').replace('_e64','') in TRANS
        self.dot = mn.startswith('v_dot')
        self.ds = mn.startswith('ds_')
        self.vmem = mn.startswith('buffer_') or mn.startswith('global_')
        self.salu = mn.startswith('s_')
        self.lds_dma = self.vmem and re.search(r'\blds\b', t) is not None
        R = [regs_of(o) for o in ops]
        self.w = set(); self.r = set(); self.srcc=set(); self.ab=set(); self.stdata=set()
        if self.mfma:
            self.w = R[0]; self.ab = R[1]|R[2]; self.srcc = R[3]; self.r = self.ab|self.srcc
        elif self.valu:
            self.w = set(R[0]); self.r = set().union(*R[1:]) if len(R)>1 else set()
            if mn.startswith(('v_fmac','v_dot2c','v_pk_fmac')): self.r |= R[0]
            if mn.startswith('v_permlane'): self.r |= R[0]; self.w |= R[1]
            if mn.startswith(('v_add_co','v_sub_co','v_addc_co')): self.w |= R[1]
            if mn.startswith('v_cndmask') and len(R)==3: self.r |= {('vcc',0)}
        elif self.ds:
            if mn.startswith('ds_read'): self.w = R[0]; self.r = set().union(*R[1:])
            else: self.r = set().union(*R)
        elif self.vmem:
            if self.lds_dma: self.r = set().union(*R) | {('m0',0)}
            elif '_load' in mn: self.w = R[0]; self.r = set().union(*R[1:])
            else:
                self.r = set().union(*R)
                if 'x4' in mn or 'x3' in mn:
                    self.stdata = R[0] if mn.startswith('buffer') else R[1]
        elif self.salu:
            if mn.startswith(('s_cmp','s_cbranch','s_branch','s_waitcnt','s_nop','s_barrier','s_sleep','s_setprio','s_endpgm','s_bitcmp')):
                self.r = set().union(*R) if R else set()
            elif R:
                self.w = R[0]; self.r = set().union(*R[1:]) if len(R)>1 else set()
        self.states = 0 if (self.label or self.directive or not self.mn) else 1
        if mn == 's_nop': self.states = int(ops[0] if ops else rest, 0)+1

def need(p, c):
    n = 0
    pv = {x for x in p.w if x[0] in 'va' and x[0]!='vcc'}
    ps = {x for x in p.w if x[0] in ('s','vcc')}
    if p.valu:
        if c.mfma and (pv & c.r): n = max(n,2)
        if p.trans and c.valu and not c.trans and (pv & c.r): n = max(n,1)
        if p.trans and (c.vmem or c.ds) and (pv & c.r): n = max(n,1)
        if c.mn.startswith('v_permlane') and (pv & c.r): n = max(n,2)
        if c.mn.startswith(('v_readlane','v_readfirstlane')) and (pv & c.r): n = max(n,1)
        if c.valu and (ps & c.r): n = max(n,2)
        if c.vmem and (ps & c.r): n = max(n,5)
        if p.dot and (c.valu or c.vmem or c.ds) and (pv & (c.r|c.w)):
            same = c.mn == p.mn and c.w == p.w and not (pv & set().union(*[regs_of(o) for o in c.ops[1:]]))
            if not same: n = max(n,3)
    if p.mfma:
        big = '32x32' in p.mn
        if c.mfma:
            if pv & c.ab: n = max(n, 12 if big else 8)
            if (pv & c.srcc) and not (c.srcc == pv): n = max(n, 10 if big else 6)
            if (pv & c.w) and not (c.srcc == pv): n = max(n, 12 if big else 8)
        elif (c.valu or c.ds or c.vmem) and (pv & (c.r|c.w)): n = max(n, 12 if big else 8)
        if c.valu and (p.srcc & c.w): n = max(n, 7 if big else 3)
    if p.stdata and (p.stdata & c.w): n = max(n, 2)
    if p.salu and ('m0',0) in p.w and c.lds_dma: n = max(n,1)
    return n

def pad_hazards(lines):
    out = []
    for t in lines:
        c = Ins(t)
        if c.mn:
            dist = 0; req = 0
            for p in reversed(out):
                if dist >= 13: break
                if p.mn:
                    k = need(p, c)
                    if k - dist > req: req = k - dist
                dist += p.states
            while req > 0:
                k = min(req, 16)
                out.append(Ins('s_nop %d' % (k-1))); req -= k
        out.append(c)
    return [i.text for i in out]
```

```python
import sys, os
sys.path.insert(0, os.path.dirname(os.path.abspath(__file__)))
from asmlib import pad_hazards
NAME = 'recurrent_scan__ssm_conv_s5__dense_activation_mish__prompt'
opt = dict(mode=2, rot=0, stamp=0)
for a in sys.argv[2:]:
    k, v = a.split('='); opt[k] = int(v)
L = []
def e(s): L.append('    ' + s)
def lab(s): L.append(s + ':')
def vr(a, n=1): return 'v%d' % a if n == 1 else 'v[%d:%d]' % (a, a+n-1)
def sr(a, n=1): return 's%d' % a if n == 1 else 's[%d:%d]' % (a, a+n-1)

SLOT = 36864
XOFF, BOFF, WOFF = 0, 16384, 24576
CORRX, CORRW = 96*1024, 100*1024
STG_A, STG_L, STG_L2 = 108*1024, 140*1024, 96*1024
MB = 156*1024
M_RSTD, M_MEAN, M_E, M_EFLAG, M_CFLAG, M_PFLAG = MB, MB+512, MB+1024, MB+3072, MB+3088, MB+3104
WS_AGG, WS_FLAG, WS_A, WS_DBG = 0x1000, 0x40000, 0x100000, 0x2000000
RG_BYTES = 75*2048
SPIN_MAX = 200000
S_WG, S_WAVE, S_RB, S_CB, S_U0, S_NU, S_TAG, S_Q = 2, 3, 4, 5, 6, 7, 8, 9
S_RB2, S_CB2, S_S0, S_CNT = 10, 11, 12, 13
S_T0, S_T1 = 14, 15
P = lambda i: 16 + 2*i
R_X, R_B, R_W1, R_W2, R_CRE, R_CIM, R_A, R_OUT, R_AGG, R_FLG = 48, 52, 56, 60, 64, 68, 72, 76, 80, 84
S_A, S_B_, S_C, S_D, S_E, S_F, S_G, S_H = 88, 89, 90, 91, 92, 93, 94, 95
S_M0, S_M1 = 96, 98
S_ONES = 100
nstamp = [0]
ST_BASE = 18
def stamp(i):
    if opt['stamp']:
        e('s_memrealtime %s' % sr(18 + 2*i, 2))

def srd(r, p, size, off=None):
    if off is None:
        e('s_mov_b32 %s, %s' % (sr(r), sr(p))); e('s_mov_b32 %s, %s' % (sr(r+1), sr(p+1)))
    else:
        e('s_add_u32 %s, %s, %s' % (sr(r), sr(p), off)); e('s_addc_u32 %s, %s, 0' % (sr(r+1), sr(p+1)))
    e('s_mov_b32 %s, 0x%x' % (sr(r+2), size)); e('s_mov_b32 %s, 0x20000' % sr(r+3))

def cmul(d, a, b):
    e('v_pk_mul_f32 %s, %s, %s op_sel_hi:[1,0]' % (vr(d,2), vr(a,2), vr(b,2)))
    e('v_pk_fma_f32 %s, %s, %s, %s op_sel:[1,1,0] op_sel_hi:[0,1,1] neg_lo:[0,1,0]' % (vr(d,2), vr(a,2), vr(b,2), vr(d,2)))
def cfma(d, a, b, c):
    e('v_pk_fma_f32 %s, %s, %s, %s op_sel_hi:[1,0,1]' % (vr(d,2), vr(a,2), vr(b,2), vr(c,2)))
    e('v_pk_fma_f32 %s, %s, %s, %s op_sel:[1,1,0] op_sel_hi:[0,1,1] neg_lo:[0,1,0]' % (vr(d,2), vr(a,2), vr(b,2), vr(d,2)))

def lds_spin(name, vaddr, vt, nd, off):
    e('s_mov_b32 %s, 0' % sr(S_CNT))
    lab(name)
    if nd == 4:
        e('ds_read_b128 %s, %s offset:%d' % (vr(vt,4), vr(vaddr), off)); e('s_waitcnt lgkmcnt(0)')
        e('v_and_b32 %s, %s, %s' % (vr(vt), vr(vt), vr(vt+1))); e('v_and_b32 %s, %s, %s' % (vr(vt+2), vr(vt+2), vr(vt+3)))
        e('v_and_b32 %s, %s, %s' % (vr(vt), vr(vt), vr(vt+2)))
    else:
        e('ds_read_b32 %s, %s offset:%d' % (vr(vt), vr(vaddr), off)); e('s_waitcnt lgkmcnt(0)')
    e('v_readfirstlane_b32 %s, %s' % (sr(S_T0), vr(vt)))
    e('s_add_u32 %s, %s, 1' % (sr(S_CNT), sr(S_CNT)))
    e('s_cmp_lg_u32 %s, 0' % sr(S_T0)); e('s_cbranch_scc1 %s_ok' % name)
    e('s_cmp_lt_u32 %s, %d' % (sr(S_CNT), SPIN_MAX)); e('s_cbranch_scc1 %s' % name)
    lab(name + '_ok')

def poll_flags(name, typ, vt, ncb):
    e('v_and_b32 %s, 15, v0' % vr(vt))
    e('v_subrev_u32 %s, %s, %s' % (vr(vt+1), sr(S_A), vr(vt)))
    e('v_cmp_gt_u32 vcc, %d, %s' % (ncb, vr(vt+1)))
    e('s_and_b32 %s, vcc_lo, -1' % sr(S_M0)); e('s_mov_b32 %s, 0' % sr(S_M0+1))
    e('v_lshrrev_b32 %s, 4, v0' % vr(vt+1))
    e('v_lshlrev_b32 %s, 7, %s' % (vr(vt+1), vr(vt+1)))
    e('v_lshl_add_u32 %s, %s, 2, %s' % (vr(vt), vr(vt), vr(vt+1)))
    e('s_lshl_b32 %s, %s, 8' % (sr(S_T1), sr(S_RB2)))
    e('s_mov_b64 exec, %s' % sr(S_M0,2))
    e('s_mov_b32 %s, 0' % sr(S_CNT))
    lab(name)
    e('buffer_load_dword %s, %s, %s, %s offen offset:%d sc1' % (vr(vt+1), vr(vt), sr(R_FLG,4), sr(S_T1), typ*64))
    e('s_add_u32 %s, %s, 1' % (sr(S_CNT), sr(S_CNT)))
    e('s_waitcnt vmcnt(0)')
    e('v_cmp_ne_u32 vcc, %s, %s' % (sr(S_TAG), vr(vt+1)))
    e('s_cbranch_vccz %s_ok' % name)
    e('s_sleep 1')
    e('s_cmp_lt_u32 %s, %d' % (sr(S_CNT), SPIN_MAX)); e('s_cbranch_scc1 %s' % name)
    lab(name + '_ok')
    e('s_mov_b64 exec, -1')

e('s_cmp_ge_u32 s2, 256'); e('s_cbranch_scc1 L_end')
e('s_load_dwordx16 s[16:31], s[0:1], 0'); e('s_load_dwordx16 s[32:47], s[0:1], 64')
e('v_lshrrev_b32 v1, 6, v0'); e('v_and_b32 v0, 63, v0')
e('v_readfirstlane_b32 %s, v1' % sr(S_WAVE))
e('s_and_b32 %s, s2, 7' % sr(S_T0)); e('s_lshr_b32 %s, s2, 3' % sr(S_T1))
if opt['mode'] == 2:
    e('s_lshr_b32 s4, s15, 4'); e('s_lshl_b32 s5, s14, 1'); e('s_add_u32 s4, s4, s5'); e('s_and_b32 s5, s15, 15')
else:
    e('s_lshr_b32 s4, s14, 1'); e('s_lshl_b32 s4, s4, 2'); e('s_lshr_b32 s5, s15, 3'); e('s_add_u32 s4, s4, s5')
    e('s_and_b32 s5, s14, 1'); e('s_lshl_b32 s5, s5, 3'); e('s_and_b32 s6, s15, 7'); e('s_add_u32 s5, s5, s6')
if opt['rot'] == 0: e('s_mov_b32 %s, 0' % sr(S_S0))
elif opt['rot'] == 1:
    e('s_add_u32 %s, s4, s5' % sr(S_S0)); e('s_and_b32 %s, %s, 7' % (sr(S_S0), sr(S_S0)))
elif opt['rot'] == 2:
    e('s_mov_b32 %s, s14' % sr(S_S0))
elif opt['rot'] == 3:
    e('s_and_b32 s12, s5, 3'); e('s_lshl_b32 s12, s12, 1'); e('s_add_u32 s12, s12, s14'); e('s_and_b32 s12, s12, 7')
elif opt['rot'] == 4:
    e('s_and_b32 s12, s5, 1'); e('s_lshl_b32 s12, s12, 2'); e('s_add_u32 s12, s12, s14'); e('s_and_b32 s12, s12, 7')
e('s_mul_i32 s6, s5, 43'); e('s_add_u32 s7, s6, 43'); e('s_lshr_b32 s6, s6, 4'); e('s_lshr_b32 s7, s7, 4'); e('s_sub_u32 s7, s7, s6')
e('s_and_b32 s10, s5, 1'); e('s_lshl_b32 s11, s4, 1'); e('s_add_u32 s10, s10, s11'); e('s_lshr_b32 s11, s5, 1')
e('s_and_b32 %s, %s, 3' % (sr(S_Q), sr(S_WAVE)))
e('s_mov_b32 %s, 0x3f803f80' % sr(S_ONES))
V_I, V_H, V_PERM, V_AB, V_AX, V_AW = 1, 2, 3, 4, 8, 12
e('v_and_b32 v1, 31, v0'); e('v_lshrrev_b32 v2, 5, v0')
e('v_bfe_u32 v3, v1, 2, 1'); e('v_lshlrev_b32 v3, 4, v3'); e('v_lshrrev_b32 v13, 3, v1'); e('v_lshl_add_u32 v3, v13, 2, v3')
e('v_and_b32 v13, 3, v1'); e('v_add_u32 v3, v3, v13')
e('v_bfe_u32 v13, v1, 1, 3'); e('v_xor_b32 v13, v13, v2'); e('v_lshlrev_b32 v14, 7, v1')
e('s_lshl_b32 %s, %s, 12' % (sr(S_A), sr(S_Q)))
for ks in range(4):
    e('v_xor_b32 v15, %d, v13' % (2*ks)); e('v_lshl_add_u32 %s, v15, 4, v14' % vr(V_AB+ks))
    e('v_add_u32 %s, %s, %s' % (vr(V_AX+ks), sr(S_A), vr(V_AB+ks)))
e('v_bfe_u32 v13, v0, 2, 2'); e('v_lshl_add_u32 v13, v2, 3, v13'); e('v_mul_u32_u24 v13, 192, v13')
e('v_bfe_u32 v14, v0, 4, 1'); e('v_lshl_add_u32 v13, v14, 5, v13'); e('v_and_b32 v14, 3, v0'); e('v_lshl_add_u32 %s, v14, 3, v13' % vr(V_AW))
e('s_waitcnt lgkmcnt(0)')
e('s_load_dword %s, %s, 0' % (sr(S_TAG), sr(P(15),2)))
srd(R_X, P(0), 2048*1024)
e('s_cmp_lt_u32 %s, 2' % sr(S_Q))
e('s_cselect_b32 %s, %s, %s' % (sr(R_B), sr(P(3)), sr(P(4)))); e('s_cselect_b32 %s, %s, %s' % (sr(R_B+1), sr(P(3)+1), sr(P(4)+1)))
e('s_mov_b32 %s, 0x%x' % (sr(R_B+2), 512*1024)); e('s_mov_b32 %s, 0x20000' % sr(R_B+3))
srd(R_W1, P(10), 512*2752)
e('s_cmp_ge_u32 %s, 4' % sr(S_WAVE)); e('s_cbranch_scc1 L_loader')

def late_srds():
    e('s_mov_b64 s[0:1], %s' % sr(P(8),2))
    srd(R_W2, P(12), 1376*1024); srd(R_CRE, P(5), 512*1024); srd(R_CIM, P(6), 512*1024)
    srd(R_A, P(15), 64*RG_BYTES, '0x%x' % WS_A); srd(R_OUT, P(13), 2048*2048)
    e('s_lshl_b32 %s, %s, 13' % (sr(S_T0), sr(S_CB))); e('s_add_u32 %s, %s, 0x%x' % (sr(S_T0), sr(S_T0), WS_AGG))
    srd(R_AGG, P(15), 8192, sr(S_T0)); srd(R_FLG, P(15), 64*128, '0x%x' % WS_FLAG)
def make_tag():
    e('s_waitcnt lgkmcnt(0)')
    e('s_mul_i32 %s, %s, 0x9E3779B1' % (sr(S_TAG), sr(S_TAG))); e('s_add_u32 %s, %s, 0x7F4A7C15' % (sr(S_TAG), sr(S_TAG)))

ACC_R, ACC_I, ACC_F = 16, 32, 48
FR = [96, 120]
V_LAM, V_KAP, V_L16, V_L128, V_L256, V_QQ = 144, 146, 148, 150, 152, 154
V_P, V_SEL = 156, 188
V_HH, V_T = 196, 228
T = V_T
e('v_and_b32 v13, 0x13, v1'); e('v_bfe_u32 v14, v1, 2, 1'); e('v_lshl_add_u32 v13, v14, 3, v13')
e('v_bfe_u32 v14, v1, 3, 1'); e('v_lshl_add_u32 v13, v14, 2, v13')
e('s_lshl_b32 %s, %s, 5' % (sr(S_T0), sr(S_CB))); e('v_add_lshl_u32 v13, v13, %s, 1' % sr(S_T0))
e('global_load_ushort %s, v13, %s' % (vr(T), sr(P(1),2)))
e('global_load_ushort %s, v13, %s' % (vr(T+1), sr(P(2),2)))
e('global_load_ushort %s, v13, %s' % (vr(T+2), sr(P(7),2)))
e('s_getpc_b64 %s' % sr(S_M0,2)); lab('L_pc')
e('s_sub_u32 %s, %s, L_pc-%s_kernel' % (sr(S_M0), sr(S_M0), NAME)); e('s_subb_u32 %s, %s, 0' % (sr(S_M0+1), sr(S_M0+1)))
e('s_lshl_b32 %s, %s, 13' % (sr(S_T0), sr(S_Q))); e('v_lshl_add_u32 v14, v0, 7, %s' % sr(S_T0))
e('v_min_u32 v14, L_end-%s_kernel, v14' % NAME)
e('global_load_dword %s, v14, %s' % (vr(T+20), sr(S_M0,2)))
late_srds()
e('v_mov_b32 v14, 0'); e('v_lshlrev_b32 v15, 2, v0'); e('v_add_u32 v15, %d, v15' % M_EFLAG); e('ds_write_b32 v15, v14')
for i in range(80): e('v_mov_b32 %s, 0' % vr(ACC_R+i))
e('v_lshlrev_b32 v14, 4, v2'); e('v_sub_u32 v14, v3, v14')
e('v_mov_b32 v15, 0x3f80'); e('v_and_b32 v13, 1, v14'); e('v_lshlrev_b32 v13, 4, v13'); e('v_lshlrev_b32 v15, v13, v15')
e('v_lshrrev_b32 v14, 1, v14')
for k in range(8):
    e('v_cmp_eq_u32 vcc, %d, v14' % k); e('v_cndmask_b32 %s, 0, v15, vcc' % vr(V_SEL+k))
make_tag()
e('s_waitcnt vmcnt(1)')
for k in range(3): e('v_lshlrev_b32 %s, 16, %s' % (vr(T+k), vr(T+k)))
stamp(0)
e('v_mul_f32 %s, 0x3fb8aa3b, %s' % (vr(T+2), vr(T+2))); e('v_exp_f32 %s, %s' % (vr(T+2), vr(T+2)))
e('v_cvt_pk_bf16_f32 %s, %s, %s' % (vr(T+2), vr(T+2), vr(T+2))); e('v_lshlrev_b32 %s, 16, %s' % (vr(T+2), vr(T+2)))
e('v_mul_f32 %s, %s, %s' % (vr(T+4), vr(T+2), vr(T))); e('v_mul_f32 %s, %s, %s' % (vr(T+5), vr(T+2), vr(T+1)))
e('v_mul_f32 %s, 0x3fb8aa3b, %s' % (vr(T+4), vr(T+4))); e('v_exp_f32 %s, %s' % (vr(T+4), vr(T+4)))
e('v_mul_f32 %s, 0.15915494, %s' % (vr(T+5), vr(T+5)))
e('v_rndne_f32 %s, %s' % (vr(T+6), vr(T+5))); e('v_sub_f32 %s, %s, %s' % (vr(T+5), vr(T+5), vr(T+6)))
e('v_cos_f32 %s, %s' % (vr(T+6), vr(T+5))); e('v_sin_f32 %s, %s' % (vr(T+7), vr(T+5)))
e('v_mul_f32 %s, %s, %s' % (vr(V_LAM), vr(T+4), vr(T+6))); e('v_mul_f32 %s, %s, %s' % (vr(V_LAM+1), vr(T+4), vr(T+7)))
e('v_mul_f32 %s, %s, %s' % (vr(T+8), vr(T), vr(T))); e('v_fmac_f32 %s, %s, %s' % (vr(T+8), vr(T+1), vr(T+1)))
e('v_rcp_f32 %s, %s' % (vr(T+8), vr(T+8)))
e('v_add_f32 %s, -1.0, %s' % (vr(T+4), vr(V_LAM))); e('v_mov_b32 %s, %s' % (vr(T+5), vr(V_LAM+1)))
e('v_add_f32 %s, %s, %s' % (vr(T+8), vr(T+8), vr(T+8)))
e('v_mul_f32 %s, %s, %s' % (vr(T+6), vr(T), vr(T+8))); e('v_mul_f32 %s, -%s, %s' % (vr(T+7), vr(T+1), vr(T+8)))
cmul(V_KAP, T+4, T+6)
cmul(V_P, V_KAP, V_LAM)
for r in range(1, 16): cmul(V_P+2*r, V_P+2*r-2, V_LAM)
cmul(T, V_LAM, V_LAM); cmul(T+2, T, T); cmul(T, T+2, T+2); cmul(V_L16, T, T)
cmul(T, V_L16, V_L16); cmul(T+2, T, T); cmul(V_L128, T+2, T+2); cmul(V_L256, V_L128, V_L128)
e('v_cmp_eq_u32 vcc, 1, v2'); e('v_cndmask_b32 %s, 1.0, %s, vcc' % (vr(T+4), vr(V_L16))); e('v_cndmask_b32 %s, 0, %s, vcc' % (vr(T+5), vr(V_L16+1)))
e('s_bitcmp1_b32 %s, 0' % sr(S_Q)); e('s_cselect_b64 vcc, -1, 0')
e('v_cndmask_b32 %s, 1.0, %s, vcc' % (vr(T), vr(T))); e('v_cndmask_b32 %s, 0, %s, vcc' % (vr(T+1), vr(T+1)))
e('s_bitcmp1_b32 %s, 1' % sr(S_Q)); e('s_cselect_b64 vcc, -1, 0')
e('v_cndmask_b32 %s, 1.0, %s, vcc' % (vr(T+2), vr(T+2))); e('v_cndmask_b32 %s, 0, %s, vcc' % (vr(T+3), vr(T+3)))
cmul(T+6, T+4, T); cmul(V_QQ, T+6, T+2)

def c_reads(buf, ks):
    f = FR[buf]
    e('ds_read_b128 %s, %s offset:%d' % (vr(f,4), vr(V_AX+ks), XOFF))
    e('ds_read_b128 %s, %s offset:%d' % (vr(f+4,4), vr(V_AB+ks), BOFF))
    e('ds_read_b128 %s, %s offset:%d' % (vr(f+8,4), vr(V_AB+ks), BOFF+4096))
    for t in range(3):
        e('ds_read_b64_tr_b16 %s, %s offset:%d' % (vr(f+12+4*t,2), vr(V_AW), WOFF + ks*3072 + t*64))
        e('ds_read_b64_tr_b16 %s, %s offset:%d' % (vr(f+14+4*t,2), vr(V_AW), WOFF + ks*3072 + t*64 + 768))
def c_mfma(buf):
    f = FR[buf]
    m = lambda acc, a, b: e('v_mfma_f32_32x32x16_bf16 %s, %s, %s, %s' % (vr(acc,16), vr(a,4), vr(b,4), vr(acc,16)))
    m(ACC_R, f, f+4); m(ACC_I, f, f+8)
    for t in range(3): m(ACC_F+16*t, f+12+4*t, f)
def adv_slot(regs):
    e('s_add_u32 %s, %s, 1' % (sr(S_B_), sr(S_B_))); e('s_cmp_eq_u32 %s, 3' % sr(S_B_))
    e('s_mov_b32 %s, %d' % (sr(S_C), SLOT)); e('s_cmov_b32 %s, %d' % (sr(S_C), -2*SLOT)); e('s_cselect_b32 %s, 0, %s' % (sr(S_B_), sr(S_B_)))
    for r in regs: e('v_add_u32 %s, %s, %s' % (vr(r), sr(S_C), vr(r)))

e('s_mov_b32 %s, 0' % sr(S_B_)); e('s_mov_b32 %s, 0' % sr(S_D))
e('s_waitcnt lgkmcnt(0)'); e('s_barrier')
stamp(1)
c_reads(0, 0)
lab('L_cloop')
for ks in range(3):
    e('s_waitcnt lgkmcnt(6)')
    c_reads((ks+1) & 1, ks+1)
    e('s_waitcnt lgkmcnt(9)')
    c_mfma(ks & 1)
adv_slot(list(range(V_AB, V_AW+1)))
e('s_add_u32 %s, %s, 1' % (sr(S_D), sr(S_D))); e('s_cmp_eq_u32 %s, 8' % sr(S_D))
e('s_waitcnt lgkmcnt(0)'); e('s_barrier')
e('s_cbranch_scc1 L_cdone')
c_reads(0, 0)
c_mfma(1)
e('s_branch L_cloop')
lab('L_cdone')
stamp(2)
V_RS = 228
e('v_lshlrev_b32 v13, 4, v0'); e('v_add_u32 v14, %d, v13' % CORRW)
e('s_lshl_b32 %s, %s, 10' % (sr(S_T0), sr(S_Q))); e('s_add_u32 %s, %s, %d' % (sr(S_T0), sr(S_T0), CORRX)); e('v_add_u32 v13, %s, v13' % sr(S_T0))
e('ds_read_b128 %s, v13' % vr(FR[0],4))
for t in range(5): e('ds_read_b128 %s, v14 offset:%d' % (vr(FR[0]+4+4*t,4), t*1024))
e('s_lshl_b32 %s, %s, 7' % (sr(S_T0), sr(S_Q))); e('s_add_u32 %s, %s, %d' % (sr(S_T0), sr(S_T0), M_RSTD))
e('v_lshl_add_u32 v13, v2, 6, %s' % sr(S_T0)); e('v_lshl_add_u32 v14, v3, 2, %s' % sr(S_T0))
for a in range(4): e('ds_read_b128 %s, v13 offset:%d' % (vr(V_RS+4*a,4), 16*a))
e('ds_read_b32 v244, v14')
c_mfma(1)
e('s_waitcnt lgkmcnt(5)')
c_mfma(0)
e('s_waitcnt lgkmcnt(0)')
for r in range(16):
    e('v_mul_f32 %s, %s, %s' % (vr(V_HH+2*r), vr(V_RS+r), vr(ACC_R+r))); e('v_mul_f32 %s, %s, %s' % (vr(V_HH+2*r+1), vr(V_RS+r), vr(ACC_I+r)))
for r in range(1, 16): cfma(V_HH+2*r, V_HH+2*r-2, V_LAM, V_HH+2*r)
e('s_lshl_b32 %s, %s, 9' % (sr(S_T0), sr(S_Q))); e('s_add_u32 %s, %s, %d' % (sr(S_T0), sr(S_T0), M_E))
e('v_lshl_add_u32 v13, v0, 3, %s' % sr(S_T0)); e('ds_write_b64 v13, %s' % vr(V_HH+30,2))
e('s_lshl_b32 %s, %s, 2' % (sr(S_T0), sr(S_Q))); e('s_add_u32 %s, %s, %d' % (sr(S_T0), sr(S_T0), M_EFLAG))
e('v_mov_b32 v14, %s' % sr(S_T0)); e('v_mov_b32 v15, 1'); e('ds_write_b32 v14, v15')
e('v_mov_b32 v14, %d' % M_EFLAG)
lds_spin('L_espin', 14, 96, 4, 0)
e('v_lshlrev_b32 v13, 3, v1'); e('v_add_u32 v13, %d, v13' % M_E)
for s in range(8): e('ds_read_b64 %s, v13 offset:%d' % (vr(96+2*s,2), s*256))
V_PRE = 16
e('s_lshl_b32 %s, %s, 1' % (sr(S_T0), sr(S_Q))); e('v_add_u32 v15, %s, v2' % sr(S_T0))
e('v_mov_b32 v16, 0'); e('v_mov_b32 v17, 0')
e('s_waitcnt lgkmcnt(0)')
for s in range(1, 8): cfma(96+2*s, 96+2*s-2, V_L16, 96+2*s)
e('s_cmp_lg_u32 %s, 0' % sr(S_Q)); e('s_cbranch_scc1 L_nopub')
e('v_mov_b32 v112, v110'); e('v_mov_b32 v113, %s' % sr(S_TAG)); e('v_mov_b32 v114, v111'); e('v_mov_b32 v115, %s' % sr(S_TAG))
e('v_lshlrev_b32 v13, 4, v1'); e('s_sub_u32 %s, 15, %s' % (sr(S_T0), sr(S_RB))); e('s_lshl_b32 %s, %s, 9' % (sr(S_T0), sr(S_T0)))
e('s_mov_b32 exec_hi, 0')
e('buffer_store_dwordx4 v[112:115], v13, %s, %s offen sc1' % (sr(R_AGG,4), sr(S_T0)))
e('s_mov_b64 exec, -1')
lab('L_nopub')
stamp(3)
for s in range(1, 8):
    e('v_cmp_eq_u32 vcc, %d, v15' % s)
    e('v_cndmask_b32 v16, v16, %s, vcc' % vr(96+2*s-2)); e('v_cndmask_b32 v17, v17, %s, vcc' % vr(96+2*s-1))
V_K1, V_K2, V_K3 = 18, 20, 22
e('v_mul_f32 v18, 0x3fb8aa3b, v244'); e('v_mul_f32 v20, -2.0, v244'); e('v_mov_b32 v22, v244')
V_ST = 24
e('v_lshlrev_b32 v24, 4, v0')
e('s_lshl_b32 %s, %s, 2' % (sr(S_E), sr(S_RB))); e('s_add_u32 %s, %s, %s' % (sr(S_E), sr(S_E), sr(S_Q)))
e('s_lshl_b32 %s, %s, 7' % (sr(S_G), sr(S_E)))
e('s_mul_i32 %s, %s, %d' % (sr(S_E), sr(S_E), RG_BYTES))
e('s_lshl_b32 %s, %s, 11' % (sr(S_F), sr(S_U0))); e('s_add_u32 %s, %s, %s' % (sr(S_F), sr(S_F), sr(S_E)))
def mish_tile(t):
    a = ACC_F + 16*t; x = 96; o = 128 + 8*(t & 1)
    for p in range(8): e('v_pk_mul_f32 %s, %s, %s op_sel_hi:[1,0]' % (vr(x+2*p,2), vr(a+2*p,2), vr(V_K1,2)))
    for r in range(16): e('v_exp_f32 %s, %s' % (vr(x+r), vr(x+r)))
    for p in range(8): e('v_pk_add_f32 %s, %s, 2.0 op_sel_hi:[1,0]' % (vr(x+16+2*p,2), vr(x+2*p,2)))
    for p in range(8): e('v_pk_fma_f32 %s, %s, %s, 2.0 op_sel_hi:[1,1,0]' % (vr(x+2*p,2), vr(x+2*p,2), vr(x+16+2*p,2)))
    for r in range(16): e('v_rcp_f32 %s, %s' % (vr(x+r), vr(x+r)))
    for p in range(8): e('v_pk_fma_f32 %s, %s, %s, %s op_sel_hi:[1,0,0]' % (vr(x+2*p,2), vr(x+2*p,2), vr(V_K2,2), vr(V_K3,2)))
    for p in range(8): e('v_pk_mul_f32 %s, %s, %s' % (vr(x+2*p,2), vr(x+2*p,2), vr(a+2*p,2)))
    for p in range(8): e('v_cvt_pk_bf16_f32 %s, %s, %s' % (vr(o+p), vr(x+2*p), vr(x+2*p+1)))
    if t == 2: e('s_add_u32 %s, %s, 4096' % (sr(S_F), sr(S_F)))
    off = 2048*(t & 1)
    e('buffer_store_dwordx4 %s, v24, %s, %s offen offset:%d sc1' % (vr(o,4), sr(R_A,4), sr(S_F), off))
    e('buffer_store_dwordx4 %s, v24, %s, %s offen offset:%d sc1' % (vr(o+4,4), sr(R_A,4), sr(S_F), off+1024))
mish_tile(0); mish_tile(1)
e('s_cmp_lt_u32 %s, 3' % sr(S_NU)); e('s_cbranch_scc1 L_no3')
mish_tile(2)
lab('L_no3')
stamp(4)
V_AG = 48
e('s_sub_u32 %s, %s, 1' % (sr(S_T0), sr(S_RB))); e('v_sub_u32 v26, %s, v2' % sr(S_T0))
e('v_sub_u32 v25, 15, v26'); e('v_lshlrev_b32 v25, 9, v25'); e('v_lshl_add_u32 v25, v1, 4, v25'); e('v_add_u32 v80, 4096, v25')
def agg_loads():
    for i in range(8): e('buffer_load_dwordx4 %s, %s, %s, 0 offen offset:%d sc1' % (vr(V_AG+4*i,4), 'v25' if i < 4 else 'v80', sr(R_AGG,4), (i & 3)*1024))
agg_loads()
V_Z = 96
for r in range(16):
    e('v_pk_mul_f32 %s, %s, %s op_sel_hi:[1,0] neg_hi:[0,1]' % (vr(V_Z+2*r,2), vr(V_HH+2*r,2), vr(V_KAP,2)))
    e('v_pk_fma_f32 %s, %s, %s, %s op_sel:[1,1,0] op_sel_hi:[0,1,1] neg_lo:[0,1,0] neg_hi:[0,1,0]' % (vr(V_Z+2*r,2), vr(V_HH+2*r,2), vr(V_KAP,2), vr(V_Z+2*r,2)))
e('v_mov_b32 v27, %s' % sr(S_TAG)); e('s_lshl_b32 %s, %s, 2' % (sr(S_T0), sr(S_CB))); e('v_mov_b32 v28, %s' % sr(S_T0))
e('s_waitcnt vmcnt(8)')
e('s_mov_b64 exec, 1'); e('buffer_store_dword v27, v28, %s, %s offen sc1' % (sr(R_FLG,4), sr(S_G))); e('s_mov_b64 exec, -1')
stamp(5)
e('s_mov_b32 %s, 0' % sr(S_CNT))
e('s_waitcnt vmcnt(1)')
lab('L_aggchk')
e('v_mov_b32 v29, 0')
for i in range(8):
    e('v_xor_b32 v30, %s, %s' % (sr(S_TAG), vr(V_AG+4*i+1))); e('v_xor_b32 v31, %s, %s' % (sr(S_TAG), vr(V_AG+4*i+3)))
    e('v_cmp_le_i32 vcc, %d, v26' % (2*i)); e('v_or_b32 v30, v30, v31'); e('v_cndmask_b32 v30, 0, v30, vcc'); e('v_or_b32 v29, v29, v30')
e('v_cmp_ne_u32 vcc, 0, v29'); e('s_cbranch_vccz L_aggok')
e('s_add_u32 %s, %s, 1' % (sr(S_CNT), sr(S_CNT))); e('s_cmp_ge_u32 %s, %d' % (sr(S_CNT), SPIN_MAX)); e('s_cbranch_scc1 L_aggok')
agg_loads()
e('s_waitcnt vmcnt(0)'); e('s_branch L_aggchk')
lab('L_aggok')
stamp(6)
for i in range(8): e('v_mov_b32 %s, %s' % (vr(V_AG+4*i+1), vr(V_AG+4*i+2)))
for i in range(6, -1, -1): cfma(V_AG+4*i, V_AG+4*i+4, V_L256, V_AG+4*i)
e('v_mov_b32 v30, v48'); e('v_mov_b32 v31, v49')
e('v_permlane32_swap_b32 v30, v48'); e('v_permlane32_swap_b32 v31, v49')
cfma(30, 48, V_L128, 30)
cfma(V_PRE, 30, V_QQ, V_PRE)
for r in range(16):
    e('v_pk_fma_f32 %s, %s, %s, %s op_sel_hi:[1,0,1] neg_hi:[0,1,0]' % (vr(V_Z+2*r,2), vr(V_P+2*r,2), vr(V_PRE,2), vr(V_Z+2*r,2)))
    e('v_pk_fma_f32 %s, %s, %s, %s op_sel:[1,1,0] op_sel_hi:[0,1,1] neg_lo:[0,1,0] neg_hi:[0,1,0]' % (vr(V_Z+2*r,2), vr(V_P+2*r,2), vr(V_PRE,2), vr(V_Z+2*r,2)))
for c in range(2):
    for p in range(8): e('v_cvt_pk_bf16_f32 %s, %s, %s' % (vr(32+8*c+p), vr(V_Z+4*p+c), vr(V_Z+4*p+2+c)))
for c in range(2):
    e('v_mfma_f32_32x32x16_bf16 %s, %s, %s, 0' % (vr(48+16*c,16), vr(32+8*c,4), vr(V_SEL,4)))
    e('v_mfma_f32_32x32x16_bf16 %s, %s, %s, %s' % (vr(48+16*c,16), vr(36+8*c,4), vr(V_SEL+4,4), vr(48+16*c,16)))
e('s_lshl_b32 %s, %s, 12' % (sr(S_F), sr(S_CB))); e('s_add_u32 %s, %s, %s' % (sr(S_F), sr(S_F), sr(S_E))); e('s_add_u32 %s, %s, %d' % (sr(S_F), sr(S_F), 43*2048))
for c in range(2):
    for p in range(8): e('v_cvt_pk_bf16_f32 %s, %s, %s' % (vr(32+8*c+p), vr(48+16*c+2*p), vr(48+16*c+2*p+1)))
    e('buffer_store_dwordx4 %s, v24, %s, %s offen offset:%d sc1' % (vr(32+8*c,4), sr(R_A,4), sr(S_F), 2048*c))
    e('buffer_store_dwordx4 %s, v24, %s, %s offen offset:%d sc1' % (vr(36+8*c,4), sr(R_A,4), sr(S_F), 2048*c+1024))
e('s_waitcnt vmcnt(0)')
e('s_mov_b64 exec, 1'); e('buffer_store_dword v27, v28, %s, %s offen offset:64 sc1' % (sr(R_FLG,4), sr(S_G))); e('s_mov_b64 exec, -1')
stamp(7)
ACC2, V_CF, RING_S = 64, 128, 16
e('s_lshl_b32 %s, %s, 2' % (sr(S_T0), sr(S_Q))); e('s_add_u32 %s, %s, %d' % (sr(S_T0), sr(S_T0), M_CFLAG)); e('v_mov_b32 v14, %s' % sr(S_T0))
lds_spin('L_cspin', 14, 15, 1, 0)
e('s_mul_i32 %s, %s, %d' % (sr(S_T0), sr(S_Q), 24576)); e('s_sub_u32 %s, %s, %d' % (sr(S_T0), sr(S_T0), 2*SLOT))
e('s_lshl_b32 %s, %s, 13' % (sr(S_T1), sr(S_Q))); e('s_add_u32 %s, %s, %d' % (sr(S_T1), sr(S_T1), STG_A - 2*SLOT))
for ks in range(4):
    e('v_add_u32 %s, %s, %s' % (vr(V_AX+ks), sr(S_T1), vr(V_AB+ks))); e('v_add_u32 %s, %s, %s' % (vr(V_AB+ks), sr(S_T0), vr(V_AB+ks)))
for st in range(4):
    for ks in range(4):
        for ct in range(2):
            d = V_CF + ((st*4+ks)*2+ct)*4
            if st < 3: e('ds_read_b128 %s, %s offset:%d' % (vr(d,4), vr(V_AB+ks), st*8192 + ct*4096))
            else: e('ds_read_b128 %s, %s offset:%d' % (vr(d,4), vr(V_AX+ks), ct*4096))
        if ks & 1: e('s_waitcnt lgkmcnt(4)')
e('s_waitcnt lgkmcnt(0)')
e('v_mov_b32 v15, 1'); e('ds_write_b32 v14, v15 offset:16')
e('s_lshl_b32 %s, %s, 2' % (sr(S_A), sr(S_Q)))
poll_flags('L_hpoll', 1, 14, 4)
stamp(8)
e('v_lshlrev_b32 v13, 4, v0')
e('s_mul_i32 %s, %s, %d' % (sr(S_E), sr(S_RB2), 2*RG_BYTES)); e('s_lshl_b32 %s, %s, 14' % (sr(S_T0), sr(S_Q)))
e('s_add_u32 %s, %s, %s' % (sr(S_E), sr(S_E), sr(S_T0))); e('s_add_u32 %s, %s, %d' % (sr(S_E), sr(S_E), 43*2048))
def p2_mfma(acc, a, w, first):
    for rg in range(2):
        for ct in range(2):
            d = acc + 16*(2*rg+ct)
            e('v_mfma_f32_32x32x16_bf16 %s, %s, %s, %s' % (vr(d,16), vr(a+4*rg,4), vr(w+4*ct,4), '0' if first else vr(d,16)))
def ssm_load(n):
    st, ks = n >> 2, n & 3
    off = (2*(2*(st >> 1) + (ks >> 1)) + (st & 1))*2048 + (ks & 1)*1024
    d = RING_S + 8*(n % 6)
    e('s_add_u32 %s, %s, %d' % (sr(S_F), sr(S_E), off)); e('s_add_u32 %s, %s, %d' % (sr(S_G), sr(S_E), off + RG_BYTES))
    e('buffer_load_dwordx4 %s, v13, %s, %s offen sc1' % (vr(d,4), sr(R_A,4), sr(S_F)))
    e('buffer_load_dwordx4 %s, v13, %s, %s offen sc1' % (vr(d+4,4), sr(R_A,4), sr(S_G)))
V_X, V_DS = 128, 136
def epi_loads():
    e('s_lshl_b32 %s, %s, 6' % (sr(S_T0), sr(S_RB2))); e('s_lshr_b32 %s, %s, 1' % (sr(S_T1), sr(S_Q))); e('s_lshl_b32 %s, %s, 5' % (sr(S_T1), sr(S_T1)))
    e('s_add_u32 %s, %s, %s' % (sr(S_T0), sr(S_T0), sr(S_T1))); e('s_lshr_b32 %s, %s, 2' % (sr(S_T1), sr(S_WAVE))); e('s_lshl_b32 %s, %s, 3' % (sr(S_T1), sr(S_T1)))
    e('s_add_u32 %s, %s, %s' % (sr(S_D), sr(S_T0), sr(S_T1)))
    e('s_lshl_b32 %s, %s, 6' % (sr(S_T0), sr(S_CB2))); e('s_and_b32 %s, %s, 1' % (sr(S_T1), sr(S_Q))); e('s_lshl_b32 %s, %s, 5' % (sr(S_T1), sr(S_T1)))
    e('s_add_u32 %s, %s, %s' % (sr(S_T0), sr(S_T0), sr(S_T1)))
    e('v_add_lshl_u32 v11, v1, %s, 1' % sr(S_T0))
    e('v_lshl_add_u32 v12, v2, 4, %s' % sr(S_D)); e('v_lshl_add_u32 v12, v12, 10, v11')
    e('global_load_ushort %s, v11, s[0:1]' % vr(V_DS))
    e('s_movk_i32 %s, 0x1000' % sr(S_T0))
    for i in range(8): e('buffer_load_ushort %s, v12, %s, %s offen offset:%d' % (vr(V_X+i), sr(R_X,4), '0' if i < 4 else sr(S_T0), (i & 3)*1024))
for n in range(6): ssm_load(n)
for n in range(16):
    newer = min(15, n+5) - n
    extra = 9 if n > 10 else 0
    e('s_waitcnt vmcnt(%d)' % (2*newer + extra))
    p2_mfma(ACC2, RING_S + 8*(n % 6), V_CF + 8*n, n == 0)
    if n+6 < 16: ssm_load(n+6)
    if n == 10: epi_loads()
stamp(9)
e('s_mul_i32 %s, %s, %d' % (sr(S_T0), sr(S_Q), 24576)); e('v_add_u32 v14, %s, v13' % sr(S_T0))
for k in range(16): e('ds_write_b128 v14, %s offset:%d' % (vr(ACC2+4*k,4), k*1024))
e('s_branch L_final')

lab('L_loader')
VX, VB, VW, VW2, VC = 16, 20, 22, 25, 29
V_B1, V_SUM, V_SQ, V_CS = 33, 36, 37, 38
V_LB, V_LW = 43, 44
LX, LF = 48, 64
V_W2 = 112
e('v_lshrrev_b32 v13, 3, v0'); e('v_and_b32 v14, 3, v13')
e('v_lshrrev_b32 v15, 4, v0'); e('v_and_b32 v45, 7, v0'); e('v_xor_b32 v45, v45, v15'); e('v_lshlrev_b32 v45, 4, v45')
e('v_xor_b32 v46, 64, v45')
e('s_lshl_b32 %s, %s, 7' % (sr(S_T0), sr(S_RB))); e('s_lshl_b32 %s, %s, 5' % (sr(S_T1), sr(S_Q))); e('s_add_u32 %s, %s, %s' % (sr(S_T0), sr(S_T0), sr(S_T1)))
e('v_lshl_add_u32 v47, v2, 4, v14'); e('v_add_lshl_u32 v47, v47, %s, 10' % sr(S_T0))
for u in range(4):
    e('v_add_u32 %s, v47, %s' % (vr(VX+u), vr(45 + (u & 1))))
    if u: e('v_add_u32 %s, %d, %s' % (vr(VX+u), u*3072, vr(VX+u)))
e('s_lshl_b32 %s, %s, 5' % (sr(S_T0), sr(S_CB))); e('s_and_b32 %s, %s, 1' % (sr(S_T1), sr(S_Q))); e('s_lshl_b32 %s, %s, 4' % (sr(S_T1), sr(S_T1))); e('s_add_u32 %s, %s, %s' % (sr(S_T0), sr(S_T0), sr(S_T1)))
e('v_lshl_add_u32 v47, v2, 3, v14'); e('v_add_lshl_u32 v47, v47, %s, 10' % sr(S_T0))
e('v_add_u32 %s, v47, v45' % vr(VB)); e('v_add_u32 %s, v47, v46' % vr(VB+1)); e('v_add_u32 %s, 3072, %s' % (vr(VB+1), vr(VB+1)))
e('s_mul_i32 %s, %s, %d' % (sr(S_T0), sr(S_Q), 16*2752)); e('s_lshl_b32 %s, %s, 6' % (sr(S_T1), sr(S_U0))); e('s_add_u32 %s, %s, %s' % (sr(S_T0), sr(S_T0), sr(S_T1)))
for b in range(3):
    e('v_add_u32 v47, %d, v0' % (64*b)); e('v_mul_u32_u24 v48, 171, v47'); e('v_lshrrev_b32 v48, 11, v48')
    e('v_mul_u32_u24 v48, %d, v48' % (2752-192)); e('v_lshl_add_u32 v48, v0, 4, v48')
    e('v_add_u32 %s, %s, v48' % (vr(VW+b), sr(S_T0)))
S_SL, S_KS, S_SOX, S_SOW, S_LX, S_LB, S_LW = S_E, S_F, S_G, S_H, S_M0, S_M0+1, S_M1
e('s_lshl_b32 %s, %s, 12' % (sr(S_LX), sr(S_Q))); e('s_lshl_b32 %s, %s, 11' % (sr(S_LB), sr(S_Q))); e('s_add_u32 %s, %s, %d' % (sr(S_LB), sr(S_LB), BOFF))
e('s_mul_i32 %s, %s, 3072' % (sr(S_LW), sr(S_Q))); e('s_add_u32 %s, %s, %d' % (sr(S_LW), sr(S_LW), WOFF))
e('s_mov_b32 %s, 0' % sr(S_SL)); e('s_mov_b32 %s, %s' % (sr(S_KS), sr(S_S0)))
def slice_ops():
    g = []
    pre = ['s_lshl_b32 %s, %s, 7' % (sr(S_SOX), sr(S_KS)), 's_mul_i32 %s, %s, %d' % (sr(S_SOW), sr(S_KS), 64*2752), 's_add_u32 m0, %s, %s' % (sr(S_SL), sr(S_LX))]
    for u in range(4):
        g.append(pre + ['buffer_load_dwordx4 %s, %s, %s offen offset:%d lds' % (vr(VX+u), sr(R_X,4), sr(S_SOX), u*1024)]); pre = []
    pre = ['s_add_u32 m0, %s, %s' % (sr(S_SL), sr(S_LB))]
    for u in range(2):
        g.append(pre + ['buffer_load_dwordx4 %s, %s, %s offen offset:%d lds' % (vr(VB+u), sr(R_B,4), sr(S_SOX), u*1024)]); pre = []
    pre = ['s_add_u32 m0, %s, %s' % (sr(S_SL), sr(S_LW))]
    for u in range(3):
        g.append(pre + ['buffer_load_dwordx4 %s, %s, %s offen offset:%d lds' % (vr(VW+u), sr(R_W1,4), sr(S_SOW), u*1024)]); pre = []
    g[-1] += ['s_add_u32 %s, %s, 1' % (sr(S_KS), sr(S_KS)), 's_and_b32 %s, %s, 7' % (sr(S_KS), sr(S_KS)),
              's_add_u32 %s, %s, %d' % (sr(S_SL), sr(S_SL), SLOT), 's_cmp_eq_u32 %s, %d' % (sr(S_SL), 3*SLOT), 's_cselect_b32 %s, 0, %s' % (sr(S_SL), sr(S_SL))]
    return g
for g in slice_ops():
    for s in g: e(s)
e('s_lshl_b32 %s, %s, 5' % (sr(S_T0), sr(S_U0))); e('v_add_lshl_u32 v47, v1, %s, 1' % sr(S_T0))
for t in range(3): e('global_load_ushort %s, v47, %s offset:%d' % (vr(V_B1+t), sr(P(11),2), 64*t))
for g in slice_ops():
    for s in g: e(s)
late_srds()
e('v_bfe_u32 v47, v0, 4, 1'); e('v_lshlrev_b32 v47, 2, v47'); e('v_and_b32 v48, 7, v0'); e('v_xor_b32 v47, v47, v48'); e('v_lshlrev_b32 v47, 4, v47')
e('v_lshl_add_u32 v47, v13, 10, v47'); e('s_lshl_b32 %s, %s, 7' % (sr(S_T0), sr(S_CB2))); e('v_add_u32 %s, %s, v47' % (vr(VW2), sr(S_T0)))
for u in range(1, 4): e('v_add_u32 %s, %d, %s' % (vr(VW2+u), u*7168, vr(VW2)))
e('s_lshl_b32 %s, %s, 6' % (sr(S_T0), sr(S_CB2))); e('v_add_lshl_u32 v47, v13, %s, 10' % sr(S_T0))
for u in range(4):
    e('v_add_u32 %s, v47, %s' % (vr(VC+u), vr(45 + (u & 1))))
    if u: e('v_add_u32 %s, %d, %s' % (vr(VC+u), u*7168, vr(VC+u)))
e('v_bfe_u32 v47, v1, 1, 3'); e('v_xor_b32 v47, v47, v2'); e('s_lshl_b32 %s, %s, 1' % (sr(S_T0), sr(S_Q))); e('v_xor_b32 v47, %s, v47' % sr(S_T0))
e('v_lshlrev_b32 v48, 7, v1'); e('v_lshl_add_u32 %s, v47, 4, v48' % vr(V_LB))
e('s_mul_i32 %s, %s, 3072' % (sr(S_T0), sr(S_Q))); e('v_add_u32 %s, %s, %s' % (vr(V_LW), sr(S_T0), vr(V_AW)))
for k in range(7): e('v_mov_b32 %s, 0' % vr(V_SUM+k))
make_tag()
stamp(0)
def stat_reads():
    for ks in range(4): e('ds_read_b128 %s, %s offset:%d' % (vr(LX+4*ks,4), vr(V_AX+ks), XOFF))
    e('ds_read_b128 %s, %s offset:%d' % (vr(LF,4), vr(V_LB), BOFF)); e('ds_read_b128 %s, %s offset:%d' % (vr(LF+4,4), vr(V_LB), BOFF+4096))
    for t in range(3):
        e('ds_read_b64_tr_b16 %s, %s offset:%d' % (vr(LF+8+4*t,2), vr(V_LW), WOFF + t*64))
        e('ds_read_b64_tr_b16 %s, %s offset:%d' % (vr(LF+10+4*t,2), vr(V_LW), WOFF + t*64 + 768))
def stat_ops():
    o = []
    for k in range(16):
        o += ['v_dot2c_f32_bf16 %s, %s, %s' % (vr(V_SUM), sr(S_ONES), vr(LX+k)), 'v_dot2c_f32_bf16 %s, %s, %s' % (vr(V_SQ), vr(LX+k), vr(LX+k))]
    for k in range(4):
        for t in range(5): o.append('v_dot2c_f32_bf16 %s, %s, %s' % (vr(V_CS+t), sr(S_ONES), vr(LF+4*t+k)))
    return o
def interleave(groups, ops):
    n = len(groups); per = (len(ops) + n - 2) // (n - 1) if n > 1 else len(ops)
    first = True
    for i, g in enumerate(groups):
        for s in g: e(s)
        if i >= 1:
            if first: e('s_waitcnt lgkmcnt(0)'); first = False
            for s in ops[:per]: e(s)
            ops = ops[per:]
    for s in ops: e(s)
S_UB = S_A
def unit_ops(i, ldsreg, ldsimm):
    pre = ['s_add_u32 %s, %s, %d' % (sr(S_SOX), sr(S_UB), i*32768), 's_add_u32 m0, %s, %d' % (sr(ldsreg), ldsimm)]
    g = []
    for u in range(4):
        g.append(pre + ['buffer_load_dwordx4 %s, %s, %s offen offset:%d lds' % (vr(VW2+u), sr(R_W2,4), sr(S_SOX), u*1024)]); pre = []
    return g
e('s_mov_b32 %s, 0' % sr(S_B_)); e('s_mov_b32 %s, 0' % sr(S_D))
lab('L_lloop')
e('s_waitcnt vmcnt(9)'); e('s_barrier')
stat_reads()
interleave(slice_ops(), stat_ops())
adv_slot([V_AX, V_AX+1, V_AX+2, V_AX+3, V_LB, V_LW])
e('s_add_u32 %s, %s, 1' % (sr(S_D), sr(S_D))); e('s_cmp_lt_u32 %s, 6' % sr(S_D)); e('s_cbranch_scc1 L_lloop')
S_PA, S_PP, S_PL = S_LX, S_LB, S_LW
e('s_mul_i32 %s, %s, %d' % (sr(S_UB), sr(S_Q), 11*32768))
e('s_lshl_b32 %s, %s, 13' % (sr(S_PA), sr(S_Q))); e('s_add_u32 %s, %s, %d' % (sr(S_PA), sr(S_PA), STG_A))
e('s_mul_i32 %s, %s, 24576' % (sr(S_PP), sr(S_Q))); e('s_lshl_b32 %s, %s, 12' % (sr(S_PL), sr(S_Q)))
e('s_waitcnt vmcnt(9)'); e('s_barrier')
stat_reads()
interleave(unit_ops(0, S_PA, 0) + unit_ops(1, S_PA, 4096) + unit_ops(9, S_PL, STG_L), stat_ops())
adv_slot([V_AX, V_AX+1, V_AX+2, V_AX+3, V_LB, V_LW])
e('s_waitcnt vmcnt(12)'); e('s_barrier')
stamp(1)
stat_reads(); e('s_waitcnt lgkmcnt(0)')
for s in stat_ops(): e(s)
for k in range(7):
    e('v_mov_b32 %s, %s' % (vr(LX+k), vr(V_SUM+k)))
for k in range(7):
    e('v_permlane32_swap_b32 %s, %s' % (vr(LX+k), vr(V_SUM+k)))
for k in range(7):
    e('v_add_f32 %s, %s, %s' % (vr(V_SUM+k), vr(V_SUM+k), vr(LX+k)))
e('v_mul_f32 v48, 0x3b000000, %s' % vr(V_SUM)); e('v_mul_f32 v49, 0x3b000000, %s' % vr(V_SQ))
e('v_fma_f32 v49, -v48, v48, v49'); e('v_max_f32 v49, 0, v49')
e('v_cvt_pk_bf16_f32 v49, v49, v49'); e('v_lshlrev_b32 v49, 16, v49'); e('v_add_f32 v49, 0x3727c5ac, v49')
e('v_cvt_pk_bf16_f32 v49, v49, v49'); e('v_lshlrev_b32 v49, 16, v49'); e('v_sqrt_f32 v49, v49')
e('v_cvt_pk_bf16_f32 v52, -v48, -v48'); e('v_cvt_pk_bf16_f32 v53, v49, 0')
e('v_lshlrev_b32 v49, 16, v53'); e('v_rcp_f32 v49, v49'); e('v_lshlrev_b32 v48, 16, v52')
e('v_cmp_eq_u32 vcc, 0, v2'); e('v_cndmask_b32 v53, 0, v53, vcc'); e('v_mov_b32 v54, v52'); e('v_mov_b32 v55, 0')
e('s_lshl_b32 %s, %s, 10' % (sr(S_T0), sr(S_Q))); e('s_add_u32 %s, %s, %d' % (sr(S_T0), sr(S_T0), CORRX)); e('v_lshl_add_u32 v50, v0, 4, %s' % sr(S_T0))
e('ds_write_b128 v50, v[52:55]')
e('s_lshl_b32 %s, %s, 7' % (sr(S_T0), sr(S_Q))); e('s_add_u32 %s, %s, %d' % (sr(S_T0), sr(S_T0), M_RSTD)); e('v_lshl_add_u32 v50, v3, 2, %s' % sr(S_T0))
e('ds_write_b32 v50, v49'); e('ds_write_b32 v50, v48 offset:512')
e('s_lshr_b32 %s, %s, 1' % (sr(S_T0), sr(S_Q))); e('s_lshl_b32 %s, %s, 9' % (sr(S_T0), sr(S_T0))); e('s_and_b32 %s, %s, 1' % (sr(S_T1), sr(S_Q))); e('s_lshl_b32 %s, %s, 3' % (sr(S_T1), sr(S_T1)))
e('s_add_u32 %s, %s, %s' % (sr(S_T0), sr(S_T0), sr(S_T1))); e('s_add_u32 %s, %s, %d' % (sr(S_T0), sr(S_T0), CORRW)); e('v_lshl_add_u32 v50, v1, 4, %s' % sr(S_T0))
e('s_cmp_eq_u32 %s, 0' % sr(S_Q)); e('s_cselect_b32 %s, 0xffff, 0' % sr(S_T0))
for t in range(5):
    d = 56 + 2*t
    e('v_cvt_pk_bf16_f32 v51, %s, %s' % (vr(V_CS+t), vr(V_CS+t))); e('v_lshlrev_b32 v51, 16, v51'); e('v_sub_f32 v66, %s, v51' % vr(V_CS+t))
    e('v_cvt_pk_bf16_f32 %s, v51, v66' % vr(d))
    if t < 2: e('v_mov_b32 %s, 0' % vr(d+1))
    else: e('v_and_b32 %s, %s, %s' % (vr(d+1), sr(S_T0), vr(V_B1+t-2)))
    e('ds_write_b64 v50, %s offset:%d' % (vr(d,2), t*1024))
e('s_waitcnt lgkmcnt(0)'); e('s_barrier')
stamp(2)
e('v_bfe_u32 v47, v0, 2, 2'); e('v_lshl_add_u32 v48, v2, 2, v47'); e('v_lshlrev_b32 v48, 7, v48'); e('v_lshrrev_b32 v47, 1, v47'); e('v_lshl_add_u32 v48, v47, 6, v48')
e('v_bfe_u32 v47, v0, 4, 1'); e('v_lshl_add_u32 v48, v47, 5, v48'); e('v_and_b32 v47, 3, v0'); e('v_lshl_add_u32 v4, v47, 3, v48'); e('v_xor_b32 v5, 64, v4')
def pull(dst, basereg, baseimm, nunits):
    e('s_add_u32 %s, %s, %d' % (sr(S_T0), sr(basereg), baseimm)); e('v_add_u32 v6, %s, v4' % sr(S_T0)); e('v_add_u32 v7, %s, v5' % sr(S_T0))
    for un in range(nunits):
        for a in range(2):
            for ct in range(2):
                d = dst + 16*un + 8*a + 4*ct
                e('ds_read_b64_tr_b16 %s, %s offset:%d' % (vr(d,2), vr(6+ct), un*4096 + a*2048))
                e('ds_read_b64_tr_b16 %s, %s offset:%d' % (vr(d+2,2), vr(6+ct), un*4096 + a*2048 + 1024))
        if un + 1 < nunits: e('s_waitcnt lgkmcnt(4)')
def emit(groups):
    for g in groups:
        for s in g: e(s)
def c_ops(st, ldsreg, ldsimm):
    r = R_CIM if (st & 1) else R_CRE
    g = []
    for hf in range(2):
        pre = ['s_add_u32 %s, %s, %d' % (sr(S_SOX), sr(S_SOW), (st >> 1)*128 + hf*32768), 's_add_u32 m0, %s, %d' % (sr(ldsreg), ldsimm + hf*4096)]
        for u in range(4):
            g.append(pre + ['buffer_load_dwordx4 %s, %s, %s offen offset:%d lds' % (vr(VC+u), sr(r,4), sr(S_SOX), u*1024)]); pre = []
    return g
e('s_lshl_b32 %s, %s, 8' % (sr(S_SOW), sr(S_Q)))
emit(unit_ops(2, S_PP, 0) + unit_ops(3, S_PP, 4096))
e('s_waitcnt vmcnt(12)'); pull(V_W2, S_PA, 0, 2)
emit(unit_ops(4, S_PP, 8192) + unit_ops(5, S_PP, 12288) + unit_ops(6, S_PP, 16384) + unit_ops(7, S_PP, 20480))
e('s_waitcnt lgkmcnt(0)')
emit(unit_ops(8, S_PA, 0))
e('s_waitcnt vmcnt(20)'); pull(V_W2+32, S_PP, 0, 2); e('s_waitcnt lgkmcnt(0)')
emit(c_ops(0, S_PP, 0))
e('s_waitcnt vmcnt(20)'); pull(V_W2+64, S_PP, 8192, 2); e('s_waitcnt lgkmcnt(0)')
emit(c_ops(1, S_PP, 8192))
e('s_waitcnt vmcnt(20)'); pull(V_W2+96, S_PP, 16384, 2); e('s_waitcnt lgkmcnt(0)')
emit(c_ops(2, S_PP, 16384))
e('s_waitcnt vmcnt(24)'); pull(V_W2+128, S_PA, 0, 1); e('s_waitcnt lgkmcnt(0)')
emit(c_ops(3, S_PA, 0))
e('s_cmp_eq_u32 %s, 3' % sr(S_Q)); e('s_cbranch_scc1 L_nou10')
e('v_mov_b32 v14, %d' % M_EFLAG)
lds_spin('L_espin2', 14, 48, 4, 0)
emit(unit_ops(10, S_PL, STG_L2))
lab('L_nou10')
e('s_lshl_b32 %s, %s, 2' % (sr(S_T0), sr(S_Q))); e('s_add_u32 %s, %s, %d' % (sr(S_T0), sr(S_T0), M_CFLAG)); e('v_mov_b32 v3, %s' % sr(S_T0)); e('v_mov_b32 v15, 1')
e('s_waitcnt vmcnt(0)'); e('ds_write_b32 v3, v15')
stamp(3)
e('s_mov_b32 %s, %s' % (sr(S_H), sr(S_PL)))
e('s_lshl_b32 %s, %s, 2' % (sr(S_A), sr(S_Q)))
poll_flags('L_apoll', 0, 14, 5)
stamp(8)
ACCF2, RING_F = 48, 8
e('v_lshlrev_b32 v0, 4, v0')
e('s_mul_i32 %s, %s, %d' % (sr(S_E), sr(S_RB2), 2*RG_BYTES)); e('s_mul_i32 %s, %s, %d' % (sr(S_T0), sr(S_Q), 11*2048)); e('s_add_u32 %s, %s, %s' % (sr(S_E), sr(S_E), sr(S_T0)))
def ffn_load(n):
    d = RING_F + 8*(n % 5)
    if n == 20:
        e('s_cmp_eq_u32 %s, 3' % sr(S_Q)); e('s_cselect_b32 %s, 0x40000000, %s' % (sr(S_E), sr(S_E)))
    e('s_add_u32 %s, %s, %d' % (sr(S_F), sr(S_E), n*1024)); e('s_add_u32 %s, %s, %d' % (sr(S_G), sr(S_E), n*1024 + RG_BYTES))
    e('buffer_load_dwordx4 %s, v0, %s, %s offen sc1' % (vr(d,4), sr(R_A,4), sr(S_F)))
    e('buffer_load_dwordx4 %s, v0, %s, %s offen sc1' % (vr(d+4,4), sr(R_A,4), sr(S_G)))
for n in range(5): ffn_load(n)
WL9, WL10 = V_W2 + 32, V_W2 + 48
for n in range(22):
    newer = min(21, n+4) - n
    if n == 20:
        e('s_cmp_eq_u32 %s, 3' % sr(S_Q)); e('s_cbranch_scc1 L_ffn_done')
    e('s_waitcnt vmcnt(%d)' % (2*newer))
    if n == 18: e('s_waitcnt lgkmcnt(0)')
    un = n >> 1
    w = (V_W2 + 16*un if un < 9 else (WL9 if un == 9 else WL10)) + 8*(n & 1)
    p2_mfma(ACCF2, RING_F + 8*(n % 5), w, n == 0)
    if n+5 < 22: ffn_load(n+5)
    if n == 9: pull(WL9, S_H, STG_L, 1)
    if n == 11: e('s_waitcnt lgkmcnt(4)'); pull(WL10, S_H, STG_L2, 1)
lab('L_ffn_done')
stamp(9)
e('s_waitcnt vmcnt(0)')
epi_loads()
lds_spin('L_pspin', 3, 15, 1, 16)
e('s_mul_i32 %s, %s, 24576' % (sr(S_T0), sr(S_Q))); e('s_add_u32 %s, %s, 16384' % (sr(S_T0), sr(S_T0))); e('v_add_u32 v14, %s, v0' % sr(S_T0))
e('s_lshl_b32 %s, %s, 13' % (sr(S_T0), sr(S_Q))); e('s_add_u32 %s, %s, %d' % (sr(S_T0), sr(S_T0), STG_A)); e('v_add_u32 v15, %s, v0' % sr(S_T0))
for k in range(16): e('ds_write_b128 %s, %s offset:%d' % (vr(14 + (k >> 3)), vr(ACCF2+4*k,4), (k & 7)*1024))
e('v_mov_b32 v13, v0')

lab('L_final')
e('s_lshr_b32 %s, %s, 2' % (sr(S_T1), sr(S_WAVE))); e('s_lshl_b32 %s, %s, 11' % (sr(S_T1), sr(S_T1)))
e('s_lshl_b32 %s, %s, 12' % (sr(S_T0), sr(S_Q))); e('s_add_u32 %s, %s, %s' % (sr(S_T0), sr(S_T0), sr(S_T1)))
e('v_add_u32 v16, %s, v13' % sr(S_T0)); e('v_add_u32 v17, %d, v16' % (2*24576))
e('s_cmp_lt_u32 %s, 2' % sr(S_Q)); e('s_mov_b32 %s, %d' % (sr(S_T1), STG_A - 8192)); e('s_cmov_b32 %s, 16384' % sr(S_T1)); e('s_mov_b32 %s, 8192' % sr(S_C)); e('s_cmov_b32 %s, 24576' % sr(S_C))
e('v_add_u32 v18, %s, v16' % sr(S_T1))
for k in range(1, 4): e('v_add_u32 %s, %s, %s' % (vr(18+k), sr(S_C), vr(17+k)))
e('s_and_b32 %s, %s, 127' % (sr(S_T0), sr(S_D))); e('s_lshl_b32 %s, %s, 2' % (sr(S_T0), sr(S_T0))); e('s_add_u32 %s, %s, %d' % (sr(S_T0), sr(S_T0), M_RSTD))
e('v_lshl_add_u32 v22, v2, 6, %s' % sr(S_T0))
e('ds_read_b128 v[24:27], v22'); e('ds_read_b128 v[28:31], v22 offset:16'); e('ds_read_b128 v[32:35], v22 offset:512'); e('ds_read_b128 v[36:39], v22 offset:528')
e('s_waitcnt lgkmcnt(0)'); e('s_barrier')
stamp(10)
FP, YP = 144, 176
for k in range(4):
    e('ds_read_b128 %s, %s' % (vr(FP+8*k,4), vr(18+k))); e('ds_read_b128 %s, %s offset:1024' % (vr(FP+8*k+4,4), vr(18+k)))
for k in range(4):
    e('ds_read_b128 %s, %s offset:%d' % (vr(YP+8*k,4), vr(16+(k >> 1)), (k & 1)*24576)); e('ds_read_b128 %s, %s offset:%d' % (vr(YP+8*k+4,4), vr(16+(k >> 1)), (k & 1)*24576+1024))
e('s_waitcnt vmcnt(0)')
for i in range(9): e('v_lshlrev_b32 %s, 16, %s' % (vr(V_X+i), vr(V_X+i)))
for p in range(4):
    e('v_pk_add_f32 %s, %s, %s' % (vr(32+2*p,2), vr(32+2*p,2), vr(V_X+2*p,2))); e('v_pk_mul_f32 %s, %s, %s' % (vr(32+2*p,2), vr(32+2*p,2), vr(24+2*p,2)))
e('v_lshlrev_b32 v12, 1, v12')
e('s_waitcnt lgkmcnt(8)')
for p in range(4):
    e('v_pk_add_f32 %s, %s, %s' % (vr(FP+2*p,2), vr(FP+2*p,2), vr(FP+8+2*p,2))); e('v_pk_add_f32 %s, %s, %s' % (vr(FP+16+2*p,2), vr(FP+16+2*p,2), vr(FP+24+2*p,2)))
for p in range(4): e('v_pk_add_f32 %s, %s, %s' % (vr(FP+2*p,2), vr(FP+2*p,2), vr(FP+16+2*p,2)))
for i in range(8): e('v_mul_f32 %s, 0xbfb8aa3b, %s' % (vr(FP+8+i), vr(FP+i)))
for i in range(8): e('v_exp_f32 %s, %s' % (vr(FP+8+i), vr(FP+8+i)))
for i in range(8): e('v_add_f32 %s, 1.0, %s' % (vr(FP+8+i), vr(FP+8+i)))
for i in range(8): e('v_rcp_f32 %s, %s' % (vr(FP+8+i), vr(FP+8+i)))
e('s_waitcnt lgkmcnt(0)')
for p in range(4):
    e('v_pk_add_f32 %s, %s, %s' % (vr(YP+2*p,2), vr(YP+2*p,2), vr(YP+8+2*p,2))); e('v_pk_add_f32 %s, %s, %s' % (vr(YP+16+2*p,2), vr(YP+16+2*p,2), vr(YP+24+2*p,2)))
for p in range(4):
    e('v_pk_add_f32 %s, %s, %s' % (vr(YP+2*p,2), vr(YP+2*p,2), vr(YP+16+2*p,2))); e('v_pk_mul_f32 %s, %s, %s' % (vr(FP+2*p,2), vr(FP+2*p,2), vr(FP+8+2*p,2)))
for i in range(8): e('v_fmac_f32 %s, %s, %s' % (vr(YP+i), vr(32+i), vr(V_DS)))
e('s_movk_i32 %s, 0x1000' % sr(S_E)); e('s_movk_i32 %s, 0x2000' % sr(S_F)); e('s_movk_i32 %s, 0x3000' % sr(S_G))
for i in range(8):
    e('v_fmac_f32 %s, %s, %s' % (vr(V_X+i), vr(YP+i), vr(FP+i)))
    e('buffer_store_dword %s, v12, %s, %s offen offset:%d' % (vr(V_X+i), sr(R_OUT,4), ['0', sr(S_E), sr(S_F), sr(S_G)][i >> 1], (i & 1)*2048))
e('s_lshl_b32 %s, %s, 4' % (sr(S_T0), sr(S_CB))); e('s_add_u32 %s, %s, %s' % (sr(S_T0), sr(S_T0), sr(S_RB))); e('s_lshl_b32 %s, %s, 8' % (sr(S_T1), sr(S_WAVE))); e('s_add_u32 %s, %s, %s' % (sr(S_T0), sr(S_T0), sr(S_T1)))
e('s_cmp_lg_u32 %s, 15' % sr(S_T0)); e('s_cbranch_scc1 L_noep')
e('v_mov_b32 v14, 0'); e('v_mov_b32 v15, %s' % sr(S_TAG)); e('s_mov_b64 exec, 1'); e('global_store_dword v14, v15, %s' % sr(P(15),2)); e('s_mov_b64 exec, -1')
lab('L_noep')
if opt['stamp']:
    e('s_waitcnt vmcnt(0)'); stamp(11); e('s_waitcnt lgkmcnt(0)')
    e('s_lshl_b32 %s, s2, 3' % sr(S_T0)); e('s_add_u32 %s, %s, %s' % (sr(S_T0), sr(S_T0), sr(S_WAVE))); e('s_lshl_b32 %s, %s, 6' % (sr(S_T0), sr(S_T0)))
    e('s_add_u32 %s, %s, 0x%x' % (sr(S_T0), sr(S_T0), WS_DBG)); e('v_mov_b32 v14, %s' % sr(S_T0)); e('s_mov_b64 exec, 1')
    for i in range(12):
        e('v_mov_b32 v15, %s' % sr(18+2*i)); e('global_store_dword v14, v15, %s offset:%d' % (sr(P(15),2), 4*i))
lab('L_end')
e('s_endpgm')

body = pad_hazards(L)
ref = open(os.path.join(os.path.dirname(os.path.abspath(__file__)), '..', 'cdna_kernels', NAME + '.s.ref')).read().split('\n')
hdr = [l for l in ref if l.startswith(';') and '@launch' not in l and 'Override' not in l and 'grid=ceil' not in l]
out = hdr + ['; @launch grid=(256,1,1) block=(512,1,1) lds=163840', '.amdgcn_target "amdgcn-amd-amdhsa--gfx950"', '.text', '.globl %s_kernel' % NAME, '.p2align 8',
   '.type %s_kernel,@function' % NAME, '%s_kernel:' % NAME] + body + ['.section .rodata,"a"', '.p2align 6', '.amdhsa_kernel %s_kernel' % NAME,
   '  .amdhsa_next_free_vgpr 256', '  .amdhsa_next_free_sgpr 102', '  .amdhsa_accum_offset 256', '  .amdhsa_group_segment_fixed_size 0', '  .amdhsa_kernarg_size 128',
   '  .amdhsa_user_sgpr_count 2', '  .amdhsa_user_sgpr_kernarg_segment_ptr 1', '  .amdhsa_system_sgpr_workgroup_id_x 1', '.end_amdhsa_kernel', '']
open(sys.argv[1], 'w').write('\n'.join(out))
```
